```python
import torch

def _softmax(x, axis=-1):
    return torch.softmax(x, dim=axis)
def _gelu(x):
    return torch.nn.functional.gelu(x, approximate="tanh")
def _silu(x):
    return torch.nn.functional.silu(x)
def _sigmoid(x):
    return torch.sigmoid(x)
def _layernorm(x, axis=-1, eps=1e-5):
    m = x.mean(dim=axis, keepdim=True)
    v = x.var(dim=axis, keepdim=True, unbiased=False)
    return (x - m) / torch.sqrt(v + eps)
def _scatter_add(tgt, idx, src, axis=0):
    return tgt.clone().index_add_(axis, idx, src)
def _segment_sum(src, seg, n):
    out = torch.zeros((n,) + src.shape[1:], dtype=src.dtype)
    return out.index_add_(0, seg, src)
def _pad(x, pw):
    flat = tuple(v for pair in reversed(pw) for v in pair)
    return torch.nn.functional.pad(x, flat)

kernel_name = 'sequential_preLN__spectral_fnet__dense_activation_squared_relu__prompt'

def setup_inputs():

    _w = (lambda a: (lambda t: t.to(torch.bfloat16) if t.is_floating_point() else t)(torch.as_tensor(a)))
    def _A_setup():
        B, S, D = 1, 2048, 512
        ns = torch.arange(S)[:, None] * torch.arange(S)[None, :]
        nd = torch.arange(D)[:, None] * torch.arange(D)[None, :]
        Ws_re = torch.cos(-2.0 * torch.pi * ns / S).to(float)
        Ws_im = torch.sin(-2.0 * torch.pi * ns / S).to(float)
        Wd_re = torch.cos(-2.0 * torch.pi * nd / D).to(float)
        Wd_im = torch.sin(-2.0 * torch.pi * nd / D).to(float)
        return {
            "x": _w((lambda *s: torch.randn(*s, dtype=torch.bfloat16) * 0.05)(B, S, D)),
            "dft_seq_re": _w(Ws_re),
            "dft_seq_im": _w(Ws_im),
            "dft_hid_re": _w(Wd_re),
            "dft_hid_im": _w(Wd_im),
        }
    _A_in = _A_setup()

    def _B_setup():
        B, S, D, F = 1, 2048, 512, 1792
        return {
            "x": _w((lambda *s: torch.randn(*s, dtype=torch.bfloat16) * 0.05)(B, S, D)),
            "w1": _w((lambda *s: torch.randn(*s, dtype=torch.bfloat16) * 0.2)(D, F)),
            "b1": _w((lambda *s: torch.randn(*s, dtype=torch.bfloat16) * 0.2)(F)),
            "w2": _w((lambda *s: torch.randn(*s, dtype=torch.bfloat16) * 0.2)(F, D)),
            "b2": _w((lambda *s: torch.randn(*s, dtype=torch.bfloat16) * 0.2)(D)),
        }
    _B_in = _B_setup()

    return {
        "A_x": _A_in["x"],
        "A_dft_seq_re": _A_in["dft_seq_re"],
        "A_dft_seq_im": _A_in["dft_seq_im"],
        "A_dft_hid_re": _A_in["dft_hid_re"],
        "A_dft_hid_im": _A_in["dft_hid_im"],
        "B_x": _B_in["x"],
        "B_w1": _B_in["w1"],
        "B_b1": _B_in["b1"],
        "B_w2": _B_in["w2"],
        "B_b2": _B_in["b2"],
    }

def reference(A_x, A_dft_seq_re, A_dft_seq_im, A_dft_hid_re, A_dft_hid_im, B_x, B_w1, B_b1, B_w2, B_b2):
    def _A_ref(x, dft_seq_re, dft_seq_im, dft_hid_re, dft_hid_im):
        a = torch.einsum("bsd,ed->bse", x, dft_hid_re)
        b = torch.einsum("bsd,ed->bse", x, dft_hid_im)
        y = torch.einsum("ts,bse->bte", dft_seq_re, a) - torch.einsum("ts,bse->bte", dft_seq_im, b)
        return y

    def _B_ref(x, w1, b1, w2, b2):
        h = torch.einsum("bsd,df->bsf", x, w1) + b1
        zero = torch.zeros_like(h)
        r = torch.where(h > zero, h, zero)
        h = r * r
        out = torch.einsum("bsf,fd->bsd", h, w2) + b2
        return out

    x = A_x
    h = x + _A_ref(_layernorm(x, axis=-1), A_dft_seq_re, A_dft_seq_im, A_dft_hid_re, A_dft_hid_im)
    h2 = h + _B_ref(_layernorm(h, axis=-1), B_w1, B_b1, B_w2, B_b2)
    return h2
```

```python
KNAME = "sequential_preLN__spectral_fnet__dense_activation_squared_relu__prompt"

HEADER = """; Kernarg layout (104 bytes, ptrs only, base s[0:1]):
"""

class K:
    def __init__(self, name, grid, block, lds=0, vgpr=256, sgpr=102, accum=None, wgy=False):
        self.name = name; self.grid = grid; self.block = block; self.lds = lds
        self.vgpr = vgpr; self.sgpr = sgpr; self.accum = accum; self.wgy = wgy
        self.lines = []
        self._lab = 0
    def __call__(self, s):
        for l in s.split("\n"):
            l = l.strip()
            if l:
                self.lines.append(("" if l.endswith(":") else "    ") + l)
                if getattr(self, "hook", None): self.hook(l)
    def label(self, base="L"):
        self._lab += 1
        return f"{self.name}_{base}{self._lab}"
    def srd(self, sd, sbase, nbytes):
        self(f"s_mov_b32 s{sd}, s{sbase}")
        self(f"s_and_b32 s{sd+1}, s{sbase+1}, 0xffff")
        self(f"s_mov_b32 s{sd+2}, {nbytes:#x}")
        self(f"s_mov_b32 s{sd+3}, 0x20000")
    def srd_off(self, sd, sbase, off, nbytes):
        self(f"s_add_u32 s{sd}, s{sbase}, {off:#x}")
        self(f"s_addc_u32 s{sd+1}, s{sbase+1}, 0")
        self(f"s_and_b32 s{sd+1}, s{sd+1}, 0xffff")
        self(f"s_mov_b32 s{sd+2}, {nbytes:#x}")
        self(f"s_mov_b32 s{sd+3}, 0x20000")
    def text(self):
        out = [".text", f".globl {self.name}", ".p2align 8", f".type {self.name},@function", f"{self.name}:"]
        import hazard
        out += hazard.fix(self.lines, verbose=getattr(self, 'verbose', False))
        return "\n".join(out) + "\n"
    def desc(self):
        accum = self.accum if self.accum is not None else ((self.vgpr + 3) // 4 * 4)
        accum = min(accum, 256)
        d = [".p2align 6", f".amdhsa_kernel {self.name}",
             f"  .amdhsa_next_free_vgpr {self.vgpr}",
             f"  .amdhsa_next_free_sgpr {self.sgpr}",
             f"  .amdhsa_accum_offset {accum}",
             "  .amdhsa_group_segment_fixed_size 0",
             "  .amdhsa_kernarg_size 104",
             "  .amdhsa_user_sgpr_count 2",
             "  .amdhsa_user_sgpr_kernarg_segment_ptr 1",
             "  .amdhsa_system_sgpr_workgroup_id_x 1"]
        if self.wgy:
            d.append("  .amdhsa_system_sgpr_workgroup_id_y 1")
        d.append("  .amdhsa_float_denorm_mode_32 3")
        d.append(".end_amdhsa_kernel")
        return "\n".join(d) + "\n"

def build(launches, kernels):
    s = HEADER
    for k in launches:
        g, b = k.grid, k.block
        s += f"; @launch kernel={k.name} grid=({g[0]},{g[1]},{g[2]}) block=({b[0]},{b[1]},{b[2]}) lds={k.lds}\n"
    s += '.amdgcn_target "amdgcn-amd-amdhsa--gfx950"\n'
    for k in kernels:
        s += k.text()
    s += '.section .rodata,"a"\n'
    for k in kernels:
        s += k.desc()
    return s
```

```python
import sys
from asmlib import *
S, D, F = 2048, 512, 1792
WS_XN = 0
WS_ABT = 4 << 20
WS_H = 8 << 20
WS_HN = 12 << 20
WS_W1T = 16 << 20
WS_W2T = 20 << 20
WS_HH = 24 << 20
ARG = dict(x=0, cs=8, ss=16, cd=24, sd=32, w1=48, b1=56, w2=64, b2=72, out=80, dbg=88, ws=96)

def load_ptr(k, sd, src):
    if src[0] == 'arg':
        k(f"s_load_dwordx2 s[{sd}:{sd+1}], s[0:1], {ARG[src[1]]}")
        k("s_waitcnt lgkmcnt(0)")
    else:
        k(f"s_load_dwordx2 s[{sd}:{sd+1}], s[0:1], {ARG['ws']}")
        k("s_waitcnt lgkmcnt(0)")
        k(f"s_add_u32 s{sd}, s{sd}, {src[1]:#x}")
        k(f"s_addc_u32 s{sd+1}, s{sd+1}, 0")

def rne_bf16_to_f32(k, v, tmp):
    k(f"v_cvt_pk_bf16_f32 v{v}, v{v}, v{v}")
    k(f"v_lshlrev_b32 v{v}, 16, v{v}")

def wave_sum(k, v, tmp):
    for off in (0x041F, 0x081F, 0x101F, 0x201F, 0x401F):
        k(f"ds_swizzle_b32 v{tmp}, v{v} offset:{off:#x}")
        k("s_waitcnt lgkmcnt(0)")
        k(f"v_add_f32 v{v}, v{v}, v{tmp}")
    k("s_nop 1")
    k(f"v_readlane_b32 s30, v{v}, 0")
    k(f"v_readlane_b32 s31, v{v}, 32")
    k("s_nop 3")
    k(f"v_mov_b32 v{v}, s30")
    k(f"v_add_f32 v{v}, s31, v{v}")

def ln_kernel(name, src, dst):
    k = K(name, (S // 4, 1, 1), (256, 1, 1), vgpr=32, sgpr=40)
    k(f"s_cmp_ge_u32 s2, {S//4}")
    k(f"s_cbranch_scc1 {name}_end")
    load_ptr(k, 4, src); load_ptr(k, 6, dst)
    k.srd(8, 4, S * D * 2); k.srd(12, 6, S * D * 2)
    k("s_lshl_b32 s3, s2, 12")
    k("v_lshlrev_b32 v1, 4, v0")
    k("v_add_u32 v1, s3, v1")
    k("buffer_load_dwordx4 v[4:7], v1, s[8:11], 0 offen")
    k("s_waitcnt vmcnt(0)")
    for i in range(4):
        k(f"v_lshlrev_b32 v{8+2*i}, 16, v{4+i}")
        k(f"v_and_b32 v{9+2*i}, 0xffff0000, v{4+i}")
    k("v_add_f32 v16, v8, v9")
    for i in range(2, 8): k(f"v_add_f32 v16, v16, v{8+i}")
    wave_sum(k, 16, 17)
    k(f"v_mul_f32 v16, {1.0/D!r}, v16")
    k("v_mov_b32 v18, 0")
    for i in range(8):
        k(f"v_sub_f32 v17, v{8+i}, v16")
        k(f"v_fmac_f32 v18, v17, v17")
    wave_sum(k, 18, 17)
    k(f"v_mul_f32 v18, {1.0/D!r}, v18")
    rne_bf16_to_f32(k, 16, 17)
    rne_bf16_to_f32(k, 18, 17)
    k("v_add_f32 v18, 0x3727c5ac, v18")
    rne_bf16_to_f32(k, 18, 17)
    k("v_sqrt_f32 v18, v18")
    k("s_nop 0")
    rne_bf16_to_f32(k, 18, 17)
    k("v_rcp_f32 v18, v18")
    k("s_nop 0")
    for i in range(8):
        k(f"v_sub_f32 v{8+i}, v{8+i}, v16")
        rne_bf16_to_f32(k, 8+i, 17)
        k(f"v_mul_f32 v{8+i}, v{8+i}, v18")
    for i in range(4):
        k(f"v_cvt_pk_bf16_f32 v{4+i}, v{8+2*i}, v{9+2*i}")
    k("buffer_store_dwordx4 v[4:7], v1, s[12:15], 0 offen")
    k(f"{name}_end:")
    k("s_endpgm")
    return k

def tr_kernel(name, src, dst, R, C):
    n = R * C
    k = K(name, (n // 256, 1, 1), (256, 1, 1), vgpr=16, sgpr=40)
    k(f"s_cmp_ge_u32 s2, {n//256}")
    k(f"s_cbranch_scc1 {name}_end")
    load_ptr(k, 4, src); load_ptr(k, 6, dst)
    k.srd(8, 4, n * 2); k.srd(12, 6, n * 2)
    k("s_lshl_b32 s3, s2, 8")
    k("v_add_u32 v1, s3, v0")
    M = (1 << 32) // C + 1
    k(f"s_mov_b32 s20, {M:#x}")
    k("v_mul_hi_u32 v2, v1, s20")
    k(f"s_mov_b32 s21, {C}")
    k("v_mul_lo_u32 v3, v2, s21")
    k("v_sub_u32 v3, v1, v3")
    k(f"s_mov_b32 s22, {R}")
    k("v_mul_lo_u32 v3, v3, s22")
    k("v_add_u32 v3, v3, v2")
    k("v_lshlrev_b32 v1, 1, v1")
    k("v_lshlrev_b32 v3, 1, v3")
    k("buffer_load_ushort v4, v1, s[8:11], 0 offen")
    k("s_waitcnt vmcnt(0)")
    k("buffer_store_short v4, v3, s[12:15], 0 offen")
    k(f"{name}_end:")
    k("s_endpgm")
    return k

def gemm_kernel(name, terms, M, N, Kd, dst, dst_row_off, ld_out, epi):
    tm, tn = M // 32, N // 32
    k = K(name, (tm * tn, 1, 1), (64, 1, 1), vgpr=96, sgpr=64)
    k(f"s_cmp_ge_u32 s2, {tm*tn}")
    k(f"s_cbranch_scc1 {name}_end")
    Mg = (1 << 32) // tm + 1
    k(f"s_mov_b32 s20, {Mg:#x}")
    k("s_mul_hi_u32 s21, s2, s20")
    k(f"s_mul_i32 s22, s21, {tm}")
    k("s_sub_u32 s22, s2, s22")
    k("v_and_b32 v1, 31, v0")
    k("v_lshrrev_b32 v2, 5, v0")
    k("s_lshl_b32 s23, s22, 5")
    k("s_lshl_b32 s24, s21, 5")
    k("v_add_u32 v3, s23, v1")
    k("v_add_u32 v4, s24, v1")
    k(f"s_mov_b32 s25, {Kd*2}")
    k("v_mul_lo_u32 v3, v3, s25")
    k("v_mul_lo_u32 v4, v4, s25")
    k("v_lshlrev_b32 v5, 4, v2")
    k("v_add_u32 v3, v3, v5")
    k("v_add_u32 v4, v4, v5")
    for ti, (As, Ao, Bs, Bo, sign) in enumerate(terms):
        acc = 32 + 16 * ti
        for r in range(16): k(f"v_mov_b32 v{acc+r}, 0")
        load_ptr(k, 4, As); load_ptr(k, 6, Bs)
        k.srd_off(8, 4, Ao, M * Kd * 2); k.srd_off(12, 6, Bo, N * Kd * 2)
        k("s_mov_b32 s26, 0")
        lab = k.label("loop")
        k(f"{lab}:")
        for u in range(2):
            k(f"buffer_load_dwordx4 v[{8+8*u}:{11+8*u}], v3, s[8:11], s26 offen offset:{32*u}")
            k(f"buffer_load_dwordx4 v[{12+8*u}:{15+8*u}], v4, s[12:15], s26 offen offset:{32*u}")
        for u in range(2):
            k(f"s_waitcnt vmcnt({2-2*u})")
            k(f"v_mfma_f32_32x32x16_bf16 v[{acc}:{acc+15}], v[{8+8*u}:{11+8*u}], v[{12+8*u}:{15+8*u}], v[{acc}:{acc+15}]")
        k("s_add_u32 s26, s26, 64")
        k(f"s_cmp_lt_u32 s26, {Kd*2}")
        k(f"s_cbranch_scc1 {lab}")
    k("s_nop 15")
    if len(terms) == 2:
        for r in range(16): k(f"v_sub_f32 v{32+r}, v{32+r}, v{48+r}")
    k("v_add_u32 v6, s24, v1")
    k(f"s_mov_b32 s25, {ld_out*2}")
    k("v_mul_lo_u32 v6, v6, s25")
    k("v_lshlrev_b32 v7, 2, v2")
    k("v_add_u32 v7, s23, v7")
    k("v_lshlrev_b32 v7, 1, v7")
    k("v_add_u32 v6, v6, v7")
    if epi.get('bias'):
        load_ptr(k, 4, epi['bias'])
        k.srd(8, 4, M * 2)
        for g in range(4):
            k(f"buffer_load_dwordx2 v[{8+2*g}:{9+2*g}], v7, s[8:11], 0 offen offset:{16*g}")
        k("s_waitcnt vmcnt(0)")
        for g in range(4):
            for j in range(2):
                k(f"v_lshlrev_b32 v20, 16, v{8+2*g+j}")
                k(f"v_and_b32 v21, 0xffff0000, v{8+2*g+j}")
                k(f"v_add_f32 v{32+4*g+2*j}, v{32+4*g+2*j}, v20")
                k(f"v_add_f32 v{33+4*g+2*j}, v{33+4*g+2*j}, v21")
    if epi.get('act'):
        for r in range(16):
            k(f"v_max_f32 v{32+r}, 0, v{32+r}")
            k(f"v_mul_f32 v{32+r}, v{32+r}, v{32+r}")
    if epi.get('res'):
        load_ptr(k, 4, epi['res'])
        k.srd(8, 4, N * ld_out * 2)
        for g in range(4):
            k(f"buffer_load_dwordx2 v[{8+2*g}:{9+2*g}], v6, s[8:11], 0 offen offset:{16*g}")
        k("s_waitcnt vmcnt(0)")
        for g in range(4):
            for j in range(2):
                k(f"v_lshlrev_b32 v20, 16, v{8+2*g+j}")
                k(f"v_and_b32 v21, 0xffff0000, v{8+2*g+j}")
                k(f"v_add_f32 v{32+4*g+2*j}, v{32+4*g+2*j}, v20")
                k(f"v_add_f32 v{33+4*g+2*j}, v{33+4*g+2*j}, v21")
    load_ptr(k, 4, dst)
    k.srd_off(8, 4, dst_row_off * ld_out * 2, N * ld_out * 2)
    for g in range(4):
        k(f"v_cvt_pk_bf16_f32 v{64+2*g}, v{32+4*g}, v{33+4*g}")
        k(f"v_cvt_pk_bf16_f32 v{65+2*g}, v{34+4*g}, v{35+4*g}")
        k(f"buffer_store_dwordx2 v[{64+2*g}:{65+2*g}], v6, s[8:11], 0 offen offset:{16*g}")
    k(f"{name}_end:")
    k("s_endpgm")
    return k

def empty_kernel(name, grid=256):
    k = K(name, (grid, 1, 1), (256, 1, 1), vgpr=8, sgpr=16)
    k("s_endpgm")
    return k

def main(nempty, out):
    ws = lambda o: ('ws', o); arg = lambda n: ('arg', n)
    ks = [
        ln_kernel("ln1_kernel", arg('x'), ws(WS_XN)),
        tr_kernel("tr1_kernel", arg('w1'), ws(WS_W1T), D, F),
        tr_kernel("tr2_kernel", arg('w2'), ws(WS_W2T), F, D),
        gemm_kernel("ga_kernel", [(ws(WS_XN), 0, arg('cd'), 0, 1)], S, D, D, ws(WS_ABT), 0, S, {}),
        gemm_kernel("gb_kernel", [(ws(WS_XN), 0, arg('sd'), 0, 1)], S, D, D, ws(WS_ABT), D, S, {}),
        gemm_kernel("gy_kernel", [(ws(WS_ABT), 0, arg('cs'), 0, 1), (ws(WS_ABT), D*S*2, arg('ss'), 0, -1)], D, S, S, ws(WS_H), 0, D, dict(res=arg('x'))),
        ln_kernel("ln2_kernel", ws(WS_H), ws(WS_HN)),
        gemm_kernel("f1_kernel", [(ws(WS_W1T), 0, ws(WS_HN), 0, 1)], F, S, D, ws(WS_HH), 0, F, dict(bias=arg('b1'), act=True)),
        gemm_kernel("f2_kernel", [(ws(WS_W2T), 0, ws(WS_HH), 0, 1)], D, S, F, arg('out'), 0, D, dict(bias=arg('b2'), res=ws(WS_H))),
    ]
    launches = list(ks)
    if nempty:
        e = empty_kernel("empty_kernel")
        ks.append(e)
        launches += [e] * nempty
    open(out, "w").write(build(launches, ks))

if __name__ == "__main__":
    main(int(sys.argv[1]), sys.argv[2])
```

```python
import re
TRANS = ("v_exp_", "v_log_", "v_rcp_", "v_rsq_", "v_sqrt_", "v_sin_", "v_cos_")
def regs(tok):
    tok = tok.strip().lstrip("-").strip("|")
    m = re.fullmatch(r"([vas])\[(\d+):(\d+)\]", tok)
    if m: return [(m.group(1), i) for i in range(int(m.group(2)), int(m.group(3))+1)]
    m = re.fullmatch(r"([vas])(\d+)", tok)
    if m: return [(m.group(1), int(m.group(2)))]
    if tok == "vcc": return [("s", 106), ("s", 107)]
    if tok == "vcc_lo": return [("s", 106)]
    if tok == "vcc_hi": return [("s", 107)]
    if tok == "m0": return [("s", 124)]
    return []
def parse(line):
    line = line.split(";")[0].strip()
    mn, _, rest = line.partition(" ")
    ops = []
    depth = 0; cur = ""
    for ch in rest:
        if ch == "[": depth += 1
        if ch == "]": depth -= 1
        if ch == "," and depth == 0: ops.append(cur.strip()); cur = ""
        else: cur += ch
    if cur.strip(): ops.append(cur.strip())
    mods = ""
    if ops:
        last = ops[-1].split(None, 1)
        ops[-1] = last[0]
        mods = last[1] if len(last) > 1 else ""
    return mn, ops, mods
def passes(mn):
    return 8 if "32x32" in mn else 4
class St:
    def __init__(self): self.ev = {}
    def copy(self):
        s = St(); s.ev = dict(self.ev); return s
    def merge(self, o):
        for k, v in o.ev.items():
            self.ev[k] = min(self.ev.get(k, 99), v)
    def tick(self, n):
        self.ev = {k: v+n for k, v in self.ev.items() if v+n < 24}
    def need(self, key, ws):
        a = self.ev.get(key)
        return 0 if a is None else max(0, ws - a)
def fix(lines, verbose=False):
    out = []; st = St(); pend = {}; nins = 0
    for raw in lines:
        l = raw.strip()
        if not l or l.startswith(";") or l.startswith("."):
            out.append(raw); continue
        if l.endswith(":"):
            lab = l[:-1]
            if lab in pend: st.merge(pend.pop(lab))
            out.append(raw); continue
        mn, ops, mods = parse(l)
        if mn == "s_nop":
            st.tick(int(ops[0], 0) + 1); out.append(raw); continue
        need = 0; wr = []; rd = []; post = []
        isv = mn.startswith("v_"); mfma = mn.startswith("v_mfma")
        mem = mn.startswith(("buffer_", "global_", "ds_"))
        if mfma:
            D, A, B, C = [regs(o) for o in ops[:4]]
            p = passes(mn)
            for r in A + B + C: need = max(need, st.need(("valu", r), 2), st.need(("dot", r), 3))
            for r in A + B:
                for pp in (4, 8): need = max(need, st.need(("mfd", r, pp), pp+4))
            for r in C + D:
                for pp in (4, 8):
                    if ("mfd", r, pp) in st.ev:
                        exact = (pp == p and C == D and ("mfx", tuple(C)) in st.ev and st.ev[("mfx", tuple(C))] == st.ev[("mfd", r, pp)])
                        if not exact: need = max(need, st.need(("mfd", r, pp), pp+2))
            post = [("mfd", r, p) for r in D] + [("mfx", tuple(D))] + [("mfc", r, p) for r in C]
        elif isv:
            both = mn.startswith(("v_permlane", "v_swap"))
            wr = regs(ops[0]); rd = []
            for o in ops[1:]: rd += regs(o)
            if both: wr = wr + regs(ops[1]); rd = rd + regs(ops[0])
            if mn.startswith(("v_fmac", "v_mac", "v_dot2c", "v_pk_fmac")) or "_dpp" in mn: rd = rd + regs(ops[0])
            if mn.startswith("v_cndmask") and len(ops) == 3: rd += regs("vcc")
            if mn.startswith(("v_add_co", "v_sub_co", "v_addc_co")): wr = wr + regs(ops[1])
            dot = mn.startswith("v_dot"); trans = mn.startswith(TRANS)
            for r in rd:
                if r[0] == "s": need = max(need, st.need(("vsg", r), 2)); continue
                if "_dpp" in mn or mn.startswith("v_permlane"): need = max(need, st.need(("valu", r), 2))
                if mn.startswith(("v_readfirstlane", "v_readlane")): need = max(need, st.need(("valu", r), 1))
                if not trans: need = max(need, st.need(("trans", r), 1))
            for r in rd + wr:
                if r[0] == "s": continue
                for pp in (4, 8): need = max(need, st.need(("mfd", r, pp), pp+4))
                if ("dot", r) in st.ev:
                    srcc_only = dot and r in regs(ops[-1]) and r not in regs(ops[1]) + regs(ops[2])
                    if not srcc_only: need = max(need, st.need(("dot", r), 3))
            for r in wr:
                if r[0] == "s": post.append(("vsg", r)); continue
                for pp in (4, 8): need = max(need, st.need(("mfc", r, pp), pp-1))
                need = max(need, st.need(("std", r), 2))
                post.append(("valu", r))
                if trans: post.append(("trans", r))
                if dot: post.append(("dot", r))
        elif mem:
            allr = []
            for o in ops: allr += regs(o)
            lds = re.search(r"\blds\b", mods) is not None or "_lds_" in mn
            for r in allr:
                if r[0] == "s": need = max(need, st.need(("vsg", r), 5)); continue
                for pp in (4, 8): need = max(need, st.need(("mfd", r, pp), pp+4))
                need = max(need, st.need(("dot", r), 3), st.need(("trans", r), 1))
            if lds: need = max(need, st.need(("m0",), 1))
            isload = ("load" in mn or "read" in mn) and not lds
            if isload:
                for r in regs(ops[0]): need = max(need, st.need(("std", r), 1))
            if "store" in mn and ("x4" in mn or "x3" in mn):
                data = regs(ops[0]) if mn.startswith("buffer") else regs(ops[1])
                post = [("std", r) for r in data]
        else:
            if ops and ops[0] == "m0": post = [("m0",)]
        if need:
            out.append(f"    s_nop {need-1}"); st.tick(need); nins += 1
            if verbose: print("nop", need, "before", l)
        out.append(raw)
        st.tick(1)
        for e in post: st.ev[e] = 0
        if mn.startswith(("s_cbranch", "s_branch")):
            lab = ops[0]
            if lab in pend: pend[lab].merge(st)
            else: pend[lab] = st.copy()
    return out
```

```python
from asmlib import *
WS_V   = 0x000000
WS_C   = 0x100000
WS_FLG = 0x110000
WS_H   = 0x200000
WS_W2  = 0x900000
WS_END = 0xac0000
STAMP  = 0x8000000
XS = 1040

def blk_ids(k, sa, sc, t0, t1):
    k(f"s_and_b32 s{t0}, s2, 7")
    k(f"s_lshl_b32 s{t0}, s{t0}, 1")
    k(f"s_bfe_u32 s{t1}, s2, 0x10004")
    k(f"s_add_u32 s{t0}, s{t0}, s{t1}")
    k(f"s_sub_u32 s{t1}, 32, s{t0}")
    k(f"s_cmp_eq_u32 s{t0}, 0")
    k(f"s_cselect_b32 s{t1}, 16, s{t1}")
    k(f"s_bitcmp1_b32 s2, 3")
    k(f"s_cselect_b32 s{sa}, s{t1}, s{t0}")
    k(f"s_lshr_b32 s{sc}, s2, 5")

class Stamper:
    def __init__(self, k, on, base=60):
        self.k = k; self.on = on; self.n = 0; self.base = base
    def __call__(self):
        if self.on:
            s = self.base + 2*self.n
            self.k(f"s_memrealtime s[{s}:{s+1}]" if self.n == 0 else f"s_memtime s[{s}:{s+1}]")
            self.n += 1
    def finish(self, kidx, wsreg, wave_sreg):
        if not self.on: return
        k = self.k
        s = self.base + 2*self.n
        k(f"s_memrealtime s[{s}:{s+1}]")
        k("s_waitcnt lgkmcnt(0)")
        lab = k.label("nost")
        k(f"s_cmp_lg_u32 s{wave_sreg}, 0"); k(f"s_cbranch_scc1 {lab}")
        k.srd_off(40, wsreg, STAMP + kidx*0x10000, 0x10000)
        k("s_mov_b64 exec, 1")
        k("s_lshl_b32 s46, s2, 6"); k("v_mov_b32 v21, s46")
        regs = [self.base, s] + [self.base+2*i for i in range(2, self.n)]
        for i, r in enumerate(regs):
            if i >= 2: k(f"s_sub_u32 s{r}, s{r}, s{self.base+2}")
            k(f"v_mov_b32 v20, s{r}")
            k(f"buffer_store_dword v20, v21, s[40:43], 0 offen offset:{4*i}")
        k(f"{lab}:")

def launch1(name="fnet_a_kernel", stamps=False, pf_w1=0, pf_w2=True, kidx=0, plan=((),(0,1),(2,3)), early_extra=False, wgran=2, spf=None, w2early=False):
    k = K(name, (256,1,1), (256,1,1), lds=64*XS + 4096 + 8192, vgpr=256, sgpr=102, accum=256)
    st = Stamper(k, stamps)
    SA, SC, SW = 20, 21, 22
    W0, T0, A0, Z0, Q0, ONE = 64, 128, 160, 208, 224, 56
    STB = 0; XB = 4096
    k("s_cmp_ge_u32 s2, 256"); k(f"s_cbranch_scc1 {name}_end")
    st(); st()
    k("s_load_dwordx2 s[4:5], s[0:1], 0")
    k("s_load_dwordx2 s[6:7], s[0:1], 96")
    k("s_load_dwordx2 s[8:9], s[0:1], 48")
    k("s_load_dwordx2 s[10:11], s[0:1], 64")
    k("s_getpc_b64 s[12:13]")
    k("v_lshlrev_b32 v2, 7, v0")
    k(f"v_min_u32 v2, code_end-{name}-68, v2")
    k("global_load_dword v63, v2, s[12:13]")
    k("v_lshrrev_b32 v2, 6, v0")
    k("v_and_b32 v1, 63, v0")
    k(f"v_readfirstlane_b32 s{SW}, v2")
    blk_ids(k, SA, SC, 23, 24)
    k(f"s_sub_u32 s23, 64, s{SA}"); k(f"s_cmp_eq_u32 s{SA}, 0"); k("s_cselect_b32 s23, 32, s23")
    k(f"s_lshl_b32 s24, s{SW}, 18")
    k(f"s_lshl_b32 s25, s{SA}, 10"); k("s_add_u32 s25, s25, s24")
    k("s_lshl_b32 s26, s23, 10")
    k(f"s_lshl_b32 s16, s{SC}, 18")
    k(f"v_mov_b32 v4, s{SA}"); k("v_mov_b32 v6, s23"); k("s_mov_b32 vcc_lo, 0xff00ff00"); k("s_mov_b32 vcc_hi, 0xff00ff00")
    k("v_cndmask_b32 v4, v4, v6, vcc"); k("v_lshl_add_u32 v4, v2, 6, v4")
    k("s_add_u32 s26, s26, s24")
    k("v_lshlrev_b32 v4, 10, v4"); k("v_and_b32 v5, 7, v0"); k("v_lshl_add_u32 v4, v5, 7, v4")
    k(f"s_mul_i32 s27, s{SW}, {4*XS}")
    k("v_lshlrev_b32 v3, 4, v1")
    k("s_mov_b32 s30, 0x200000"); k("s_mov_b32 s31, 0x20000")
    k(f"s_add_u32 m0, s27, {XB}")
    k("s_waitcnt lgkmcnt(0)")
    k("s_mov_b32 s28, s4"); k("s_and_b32 s29, s5, 0xffff")
    k("buffer_load_dword v62, v4, s[28:31], s16 offen")
    k.srd(44, 6, WS_END)
    k(f"s_lshl_b32 s16, s2, 7"); k(f"s_add_u32 s16, s16, {WS_FLG}"); k("v_mov_b32 v6, 0")
    k("buffer_store_dword v6, v6, s[44:47], s16 offen sc1")
    def dma(mt):
        for u in range(4):
            if mt or u: k(f"s_add_u32 m0, s27, {XB + (16*mt+u)*XS}")
            k(f"s_add_u32 s16, s{25 + (mt>>1)}, {((mt&1)*16+u)*65536}")
            k("buffer_load_dwordx4 v3, s[28:31], s16 offen lds")
    def spf_w2():
        k("s_min_u32 s14, s2, 223"); k("s_lshr_b32 s15, s14, 2"); k("s_lshl_b32 s15, s15, 2"); k(f"s_add_u32 s15, s15, s{SW}"); k("s_lshl_b32 s15, s15, 13")
        k("s_and_b32 s14, s14, 3"); k("s_lshl_b32 s14, s14, 8"); k("s_add_u32 s14, s14, s15"); k("s_add_u32 s14, s14, s10"); k("s_addc_u32 s15, s11, 0")
        for r in range(8):
            for h in range(2): k(f"s_load_dword s18, s[14:15], {r*1024 + h*128}")
    def spf_w1():
        k("s_min_u32 s16, s2, 223"); k("s_mul_i32 s14, s16, 2341"); k("s_lshr_b32 s14, s14, 16"); k("s_mul_i32 s15, s14, 28"); k("s_sub_u32 s15, s16, s15")
        k("s_lshl_b32 s14, s14, 2"); k(f"s_add_u32 s14, s14, s{SW}"); k("s_mul_i32 s14, s14, 16*3584"); k("s_lshl_b32 s15, s15, 7"); k("s_add_u32 s14, s14, s15")
        k("s_add_u32 s14, s14, s8"); k("s_addc_u32 s15, s9, 0")
        for r in range(16): k(f"s_load_dword s19, s[14:15], {r*3584}")
    for mt in plan[0]: dma(mt)
    if spf:
        if spf[0] == 0: spf_w2()
        if spf[1] == 0: spf_w1()
    st()
    k("v_and_b32 v4, 7, v1")
    k(f"s_lshl_b32 s16, s{SC}, 5"); k(f"s_lshl_b32 s17, s{SW}, 3"); k("s_add_u32 s16, s16, s17")
    k("v_add_u32 v4, s16, v4")
    k("v_cmp_eq_u32 vcc, 0, v4")
    k("v_mov_b32 v5, 0x100")
    k("v_bfe_u32 v7, v1, 4, 1")
    k("v_cndmask_b32 v4, v4, v5, vcc")
    k("v_lshlrev_b32 v6, 31, v4"); k("v_lshrrev_b32 v5, 16, v6"); k("v_or_b32 v6, v6, v5")
    k("v_cvt_f32_u32 v4, v4"); k("v_mul_f32 v4, 0x3b000000, v4")
    k("v_lshlrev_b32 v7, 7, v7"); k("v_bfe_u32 v8, v1, 5, 1"); k("v_lshl_add_u32 v7, v8, 6, v7")
    k(f"s_and_b32 s16, s{SW}, 1"); k("s_lshl_b32 s16, s16, 5"); k(f"s_lshr_b32 s17, s{SW}, 1"); k("s_lshl_b32 s17, s17, 8"); k("s_or_b32 s16, s16, s17")
    k("v_or_b32 v8, s16, v7")
    k("v_xor_b32 v9, 32, v8")
    k("v_and_b32 v14, 15, v1"); k(f"v_mul_u32_u24 v14, {XS}, v14")
    k("v_lshl_add_u32 v10, v8, 1, v14"); k("v_lshl_add_u32 v11, v9, 1, v14")
    k("v_xor_b32 v15, 0x100, v8"); k("v_lshl_add_u32 v12, v15, 1, v14")
    k("v_xor_b32 v15, 0x100, v9"); k("v_lshl_add_u32 v13, v15, 1, v14")
    k("v_bfe_u32 v15, v1, 3, 1"); k("v_cvt_f32_u32 v16, v15"); k("v_mul_f32 v16, 0x3e800000, v16")
    k("v_lshlrev_b32 v17, 31, v15"); k("v_lshrrev_b32 v18, 16, v17"); k("v_or_b32 v17, v17, v18")
    k("v_cvt_f32_u32 v8, v8"); k("v_cvt_f32_u32 v9, v9")
    k("v_fma_f32 v8, v8, v4, v16"); k("v_fma_f32 v9, v9, v4, v16")
    k("v_add_f32 v18, v4, v4"); k("v_cos_f32 v18, v18")
    for j in range(4):
        for q in range(2):
            k(f"v_cos_f32 v{20+4*q+j}, v{8+q}")
            if j < 3: k(f"v_add_f32 v{8+q}, v{8+q}, v4")
    k("v_add_f32 v18, v18, v18"); k("v_mov_b32 v19, v18")
    for i in range(16):
        for q in range(2):
            p = 20+4*q+2*(i&1)
            k(f"v_cvt_pk_bf16_f32 v{W0+16*q+i}, v{p}, v{p+1}")
        if i < 14:
            for q in range(2):
                p = 20+4*q+2*(i&1); o = 20+4*q+2*((i+1)&1)
                k(f"v_pk_fma_f32 v[{p}:{p+1}], v[18:19], v[{o}:{o+1}], v[{p}:{p+1}] neg_lo:[0,0,1] neg_hi:[0,0,1]")
        for q in range(2):
            k(f"v_xor_b32 v{W0+32+16*q+i}, v6, v{W0+16*q+i}")
    k.srd(36, 10, 1792*1024)
    k("s_lshr_b32 s15, s2, 2"); k("s_lshl_b32 s56, s15, 15"); k("s_and_b32 s57, s2, 3"); k("s_lshl_b32 s57, s57, 2"); k(f"s_add_u32 s57, s57, s{SW}")
    k("s_lshl_b32 s58, s57, 6"); k("s_add_u32 s56, s56, s58")
    k("v_lshrrev_b32 v5, 2, v1"); k("v_and_b32 v6, 3, v1"); k("v_lshlrev_b32 v7, 10, v5"); k("v_lshl_add_u32 v7, v6, 4, v7"); k("v_add_u32 v61, s56, v7")
    k(f"s_lshl_b32 s59, s{SW}, 11"); k(f"s_add_u32 s59, s59, {XB + 64*XS}")
    k("v_lshlrev_b32 v5, 6, v5"); k("v_lshl_add_u32 v5, v6, 3, v5"); k("v_add_u32 v55, s59, v5")
    k("s_lshr_b32 s58, s57, 1"); k("s_mul_i32 s58, s58, 56"); k("s_add_u32 s58, s58, s15"); k("s_lshl_b32 s58, s58, 12")
    k("s_and_b32 s57, s57, 1"); k("s_lshl_b32 s57, s57, 11"); k("s_add_u32 s58, s58, s57"); k(f"s_add_u32 s58, s58, {WS_W2}")
    k(f"s_cmp_ge_u32 s2, 224"); k(f"s_cselect_b32 s58, {WS_END}, s58")
    k("v_add_u32 v54, s58, v3")
    st()
    for mt in plan[1]: dma(mt)
    w2ld = ["s_mov_b32 m0, s59\ns_nop 0\nbuffer_load_dwordx4 v61, s[36:39], 0 offen lds", "s_add_u32 m0, s59, 1024\ns_movk_i32 s15, 0x4000\nbuffer_load_dwordx4 v61, s[36:39], s15 offen lds"]
    if w2early:
        for e in w2ld: k(e)
    if spf:
        if spf[0] == 1: spf_w2()
        if spf[1] == 1: spf_w1()
    st()
    k("v_and_b32 v4, 15, v1")
    k("v_lshlrev_b32 v6, 31, v4"); k("v_lshrrev_b32 v7, 16, v6"); k("v_or_b32 v6, v6, v7")
    k("v_lshrrev_b32 v5, 4, v1"); k("v_lshlrev_b32 v5, 8, v5")
    k(f"s_cmp_eq_u32 s{SA}, 0"); k("s_cselect_b32 s16, 0x3e800000, 0")
    for N in range(2):
        k(f"v_add_u32 v7, {16*N}, v4"); k("v_cvt_f32_u32 v7, v7")
        k("v_mul_f32 v18, 0x3d000000, v7")
        k("v_mul_f32 v7, 0x3a000000, v7")
        for S in range(2):
            k(f"v_add_u32 v8, s{SA if S == 0 else 23}, v5"); k("v_cvt_f32_u32 v8, v8")
            if S == 0: k("v_mul_f32 v8, v8, v7")
            else: k("v_fma_f32 v8, v8, v7, s16")
            b = T0 + (S*2+N)*8
            for jp in range(2):
                k("v_cos_f32 v20, v8"); k("v_sin_f32 v22, v8"); k("v_add_f32 v8, v8, v18")
                k("v_cos_f32 v21, v8"); k("v_sin_f32 v23, v8")
                if jp == 0: k("v_add_f32 v8, v8, v18")
                k(f"v_cvt_pk_bf16_f32 v{b+jp}, v20, v21"); k(f"v_cvt_pk_bf16_f32 v{b+4+jp}, v22, v23")
                k(f"v_xor_b32 v{b+2+jp}, v6, v{b+jp}"); k(f"v_xor_b32 v{b+6+jp}, v6, v{b+4+jp}")
    for i in range(4): k(f"v_mov_b32 v{ONE+i}, 0x3f803f80")
    k("v_ashrrev_i32 v21, 31, v17"); k("v_not_b32 v20, v21")
    k(f"s_cmp_lg_u32 s{SA}, 0"); k("s_cselect_b32 s16, -1, 0"); k("v_or_b32 v20, s16, v20"); k("v_or_b32 v21, s16, v21")
    k("v_and_b32 v4, 3, v1")
    k("v_cmp_eq_u32 s[48:49], 1, v4"); k("v_cmp_eq_u32 s[50:51], 2, v4"); k("v_cmp_eq_u32 s[52:53], 3, v4")
    k("v_bfe_u32 v4, v1, 2, 2"); k("v_lshrrev_b32 v5, 4, v1"); k("v_cmp_eq_u32 s[54:55], v4, v5")
    k("v_and_b32 v4, 15, v1"); k(f"s_lshl_b32 s16, s{SW}, 9"); k(f"s_add_u32 s16, s16, {STB}")
    k("v_lshl_add_u32 v19, v4, 3, s16"); k(f"v_mov_b32 v5, {STB+3072}"); k("v_cndmask_b32 v19, v5, v19, s[54:55]")
    k(f"s_lshl_b32 s16, s{SW}, 8"); k(f"s_add_u32 s16, s16, {STB+2048}")
    k("v_lshl_add_u32 v14, v1, 2, s16")
    k("v_and_b32 v15, 0x30, v1"); k("v_add_u32 v15, s16, v15")
    k("v_lshlrev_b32 v16, 3, v1")
    k.srd(32, 8, 512*3584)
    k("s_mul_i32 s14, s2, 2341"); k("s_lshr_b32 s14, s14, 16")
    k("s_mul_i32 s15, s14, 28"); k("s_sub_u32 s15, s2, s15")
    k("s_mul_i32 s14, s14, 64*3584"); k("s_lshl_b32 s15, s15, 7"); k("s_add_u32 s14, s14, s15"); k(f"s_lshl_b32 s15, s{SW}, 5"); k("s_add_u32 s14, s14, s15")
    k("v_mul_u32_u24 v4, 3584, v1"); k("v_add_u32 v4, s14, v4")
    if pf_w1:
        k("s_lshr_b32 s15, s2, 3"); k(f"s_mul_i32 s15, s15, {pf_w1*4}"); k(f"s_mul_i32 s57, s{SW}, {pf_w1}"); k("s_add_u32 s15, s15, s57")
        k(f"v_min_u32 v5, {pf_w1-1}, v1"); k("v_add_u32 v5, s15, v5")
        k(f"v_cmp_le_u32 vcc, {pf_w1*64}, v5"); k(f"v_add_u32 v6, {128*28 - pf_w1*64}, v5"); k("v_cndmask_b32 v5, v5, v6, vcc"); k("v_lshlrev_b32 v9, 7, v5")
    st()
    for mt in plan[2]: dma(mt)
    st()
    extra = ["buffer_load_dwordx4 v[40:43], v4, s[32:35], 0 offen", "buffer_load_dwordx4 v[44:47], v4, s[32:35], 0 offen offset:16"]
    if pf_w1: extra.append("buffer_load_dword v60, v9, s[32:35], 0 offen")
    if not w2early: extra = w2ld + extra
    nextra = len(extra)
    if early_extra:
        for e in extra: k(e)
        extra = []
    NB = 12
    order = [(0,u) for u in range(16)] + [(1,u) for u in range(16)] + [(2,u) for u in range(4)] + [(3,u) for u in range(4)] + [(2,u) for u in range(4,16)] + [(3,u) for u in range(4,16)]
    sync = {0: 8, 32: nextra}
    def rd(i):
        mt, u = order[i]; r = A0 + 4*(i % NB)
        k(f"ds_read_b128 v[{r}:{r+3}], v{10+(u>>2)} offset:{XB + mt*16*XS + 16*(u&3)}")
    issued = 0
    q = []
    def issue_upto(lim, i):
        nonlocal issued
        while issued < lim and issued < i + NB:
            rd(issued); q.append(issued); issued += 1
    def wait_for(tag):
        idx = q.index(tag); n = len(q) - 1 - idx
        k(f"s_waitcnt lgkmcnt({min(n,15)})"); del q[:idx+1]
    def pick(mt):
        qq = Q0+8*mt
        for j, m in ((1,48),(2,50),(3,52)):
            for h in range(2):
                src = f"v{qq+4*h}" if j == 1 else f"v{24+h}"
                k(f"v_cndmask_b32 v{24+h}, {src}, v{qq+4*h+j}, s[{m}:{m+1}]")
        k(f"ds_write_b64 v19, v[24:25] offset:{mt*128}"); q.append(("w", mt))
    def selgen():
        L = ["v_and_b32 v4, 15, v1", "v_lshrrev_b32 v5, 1, v4", "v_and_b32 v6, 1, v4", "v_lshlrev_b32 v6, 4, v6", "v_mov_b32 v7, 0x3f80", "v_lshlrev_b32 v7, v6, v7"]
        for i in range(8): L += [f"v_cmp_eq_u32 s[{48+2*(i&3)}:{49+2*(i&3)}], {i}, v5"] + ([f"v_cndmask_b32 v{64+i-2}, 0, v7, s[{48+2*((i-2)&3)}:{49+2*((i-2)&3)}]"] if i >= 2 else [])
        L += ["v_lshl_add_u32 v72, v4, 2, s56", "v_cndmask_b32 v70, 0, v7, s[52:53]", "v_cndmask_b32 v71, 0, v7, s[54:55]"]
        return L
    sel = selgen()
    lim = 0; PK = 26 if w2early else 58
    for i, (mt, u) in enumerate(order):
        if i == 0:
            k(f"s_waitcnt vmcnt({10 if w2early else 8})"); k("s_barrier"); st(); lim = 32
            issue_upto(lim, i)
        if i == 24:
            k(f"s_waitcnt vmcnt({nextra})"); k("s_barrier"); st(); lim = 64
        if i in q:
            j = i
            while j+1 in q and (j+1) % wgran: j += 1
            wait_for(j)
        r = A0 + 4*(i % NB); z = Z0+4*mt
        c = "0" if u == 0 else f"v[{z}:{z+3}]"
        k(f"v_mfma_f32_16x16x32_bf16 v[{z}:{z+3}], v[{r}:{r+3}], v[{W0+4*u}:{W0+4*u+3}], {c}")
        if u < 4:
            qq = Q0+8*mt
            c = "0" if u == 0 else f"v[{qq}:{qq+3}]"
            k(f"v_mfma_f32_16x16x32_bf16 v[{qq}:{qq+3}], v[{r}:{r+3}], v[{r}:{r+3}], {c}")
            c = "0" if u == 0 else f"v[{qq+4}:{qq+7}]"
            k(f"v_mfma_f32_16x16x32_bf16 v[{qq+4}:{qq+7}], v[{r}:{r+3}], v[{ONE}:{ONE+3}], {c}")
        issue_upto(min(lim, issued+2), i+1)
        if i in (1, 3, 5, 7, 9) and extra: k(extra.pop(0))
        if i == PK:
            if not w2early: k(f"s_waitcnt vmcnt({nextra-2})")
            for i2 in range(2):
                for h in range(2): k(f"ds_read_b64_tr_b16 v[{32+4*i2+2*h}:{33+4*i2+2*h}], v55 offset:{32*i2 + 1024*h}"); q.append(("t", i2, h))
        if i == PK+4:
            if ("t",1,1) in q: wait_for(("t",1,1))
            k("buffer_store_dwordx4 v[32:35], v54, s[44:47], 0 offen")
        if i == PK+5: k("buffer_store_dwordx4 v[36:39], v54, s[44:47], 0 offen offset:1024")
        if i == 43:
            k(f"s_lshl_b32 s56, s2, 8"); k(f"s_lshl_b32 s17, s{SW}, 6"); k("s_add_u32 s56, s56, s17"); k(f"s_add_u32 s56, s56, {WS_C}")
            k(f"s_cmp_ge_u32 s2, 224"); k(f"s_cselect_b32 s56, {WS_END}, s56")
        if i >= 44 and (i < 49 or i > 55):
            for _ in range(2):
                if sel: k(sel.pop(0))
        if i == 8: pick(0)
        if i == 22: pick(1)
        if i == 38: pick(2)
        if i == 42: pick(3)
        if i == 44:
            wait_for(("w", 3)); k("s_barrier")
            for w in range(4): k(f"ds_read_b64 v[{24+2*w}:{25+2*w}], v16 offset:{STB + 512*w}"); q.append(("p", w))
        if i == 49:
            wait_for(("p", 3))
            k("v_add_f32 v24, v24, v26"); k("v_add_f32 v25, v25, v27")
        if i == 50: k("v_add_f32 v28, v28, v30"); k("v_add_f32 v29, v29, v31")
        if i == 51: k("v_add_f32 v24, v24, v28"); k("v_add_f32 v25, v25, v29"); k("s_mov_b32 s16, 0x3b000000")
        if i == 52: k("v_mul_f32 v25, s16, v25"); k("v_mov_b32 v26, 0x3727c5ac")
        if i == 53: k("v_fma_f32 v24, v24, s16, v26"); k("v_fma_f32 v24, -v25, v25, v24")
        if i == 54: k("v_max_f32 v24, v24, v26"); k("v_rsq_f32 v24, v24")
        if i == 55:
            k("ds_write_b32 v14, v24"); q.append(("r",))
            for m2 in range(4): k(f"ds_read_b128 v[{Q0+4*m2}:{Q0+4*m2+3}], v15 offset:{64*m2}"); q.append(("rr", m2))
    assert not sel
    st()
    B0 = 24; A2 = 32
    k("s_waitcnt lgkmcnt(0)")
    for mt in range(4):
        z = Z0+4*mt; r = Q0+4*mt
        k(f"v_pk_mul_f32 v[{z}:{z+1}], v[{z}:{z+1}], v[{r}:{r+1}]")
        k(f"v_pk_mul_f32 v[{z+2}:{z+3}], v[{z+2}:{z+3}], v[{r+2}:{r+3}]")
        k(f"v_cvt_pk_bf16_f32 v{B0+2*mt}, v{z}, v{z+1}")
        k(f"v_cvt_pk_bf16_f32 v{B0+2*mt+1}, v{z+2}, v{z+3}")
    for i in range(4): k(f"v_xor_b32_dpp v{A2+i}, v{B0+i}, v17 row_ror:8 row_mask:0xf bank_mask:0xf")
    for i in range(4): k(f"v_and_b32 v{B0+i}, v20, v{B0+i}")
    for i in range(4,8): k(f"v_and_b32_dpp v{A2+i}, v{B0+i}, v21 row_ror:8 row_mask:0xf bank_mask:0xf")
    for i in range(4): k(f"v_and_b32 v{A2+i}, v20, v{A2+i}")
    for i in range(4,8): k(f"v_bitop3_b32 v{B0+i}, v{B0+i}, v17, v21 bitop3:0x28")
    D0 = 48
    for S in range(2):
        for cs in range(2):
            for N in range(2):
                a = (B0 if cs == 0 else A2) + 4*S; t = T0 + (S*2+N)*8 + 4*cs; d = D0+4*N
                c = "0" if (S == 0 and cs == 0) else f"v[{d}:{d+3}]"
                k(f"v_mfma_f32_16x16x32_bf16 v[{d}:{d+3}], v[{a}:{a+3}], v[{t}:{t+3}], {c}")
    k("v_and_b32 v4, 31, v1"); k("v_lshlrev_b32 v4, 15, v4"); k("v_lshrrev_b32 v5, 5, v1"); k("v_lshl_add_u32 v4, v5, 6, v4")
    k(f"s_and_b32 s16, s{SA}, 1"); k(f"s_xor_b32 s16, s16, s{SC}"); k("s_lshl_b32 s16, s16, 7")
    k(f"s_lshl_b32 s17, s{SA}, 10"); k("s_add_u32 s16, s16, s17"); k(f"s_lshl_b32 s17, s{SW}, 4"); k("s_add_u32 s16, s16, s17")
    k(f"v_cvt_pk_bf16_f32 v24, v{D0}, v{D0+1}"); k(f"v_cvt_pk_bf16_f32 v25, v{D0+2}, v{D0+3}")
    k(f"v_cvt_pk_bf16_f32 v26, v{D0+4}, v{D0+5}"); k(f"v_cvt_pk_bf16_f32 v27, v{D0+6}, v{D0+7}")
    k("v_permlane16_swap_b32 v24, v26"); k("v_permlane16_swap_b32 v25, v27")
    k("buffer_store_dwordx4 v[24:27], v4, s[44:47], s16 offen")
    st()
    st(); k(f"s_waitcnt vmcnt({nextra - (2 if w2early else 4) + 3})"); st()
    k("v_mfma_f32_16x16x32_bf16 v[48:51], v[40:43], v[64:67], 0")
    k("v_mfma_f32_16x16x32_bf16 v[48:51], v[44:47], v[68:71], v[48:51]")
    k("v_add_f32 v48, v48, v49"); k("v_add_f32 v50, v50, v51"); k("v_add_f32 v48, v48, v50")
    k("v_mov_b32 v49, v48"); k("v_permlane32_swap_b32 v48, v49"); k("v_add_f32 v48, v48, v49")
    k("v_mov_b32 v49, v48"); k("v_permlane16_swap_b32 v48, v49"); k("v_add_f32 v48, v48, v49")
    k("s_mov_b64 exec, 0xffff")
    k("buffer_store_dword v48, v72, s[44:47], 0 offen")
    if stamps:
        k("s_mov_b64 exec, -1"); st()
        k("s_waitcnt vmcnt(1)"); st()
        k("s_waitcnt vmcnt(0)"); st()
    st.finish(kidx, 6, SW)
    k(f"{name}_end:")
    k("s_endpgm")
    return k

if __name__ == "__main__":
    import sys
    o = {"a": dict(), "b": dict(pf_w1=24), "c": dict(pf_w1=56)}
    k1 = launch1(stamps=True, **o[sys.argv[2]])
    k1("code_end:")
    open(sys.argv[1], "w").write(build([k1], [k1]))
```

```python
from asmlib import *
from l1 import *
RB = 64*XS; SL = 28672
PQB = RB + SL
STB = RB + 3*SL
CBB = PQB + 65536
LDS2 = 160*1024

class Q:
    def __init__(self, k, name, mx): self.k = k; self.name = name; self.mx = mx; self.q = []
    def __call__(self, ins, tag=None): self.q.append(tag); self.k(ins)
    def wait(self, tag):
        if tag not in self.q: return
        idx = len(self.q) - 1 - self.q[::-1].index(tag); n = len(self.q) - 1 - idx
        del self.q[:idx+1]
        self.k(f"s_waitcnt {self.name}({min(n, self.mx)})")
    def all(self):
        if self.q: self.q = []; self.k(f"s_waitcnt {self.name}(0)")

class Pacer:
    def __init__(s): s.jobs = []; s.every = 0; s.cnt = 0; s.busy = False
    def start(s, jobs, every): s.jobs = s.jobs + list(jobs); s.every = every
    def tick(s, line):
        if s.busy or not s.jobs: return
        if line.startswith("v_mfma"): c = 32 if "32x32" in line else 16
        elif line.startswith(("v_cos", "v_sin")): c = 8
        elif line.startswith("v_"): c = s.vc
        else: c = 0
        s.cnt += c
        if s.cnt >= s.every and line.startswith("v_"):
            s.cnt = 0; s.busy = True; s.jobs.pop(0)(); s.busy = False
    def flush(s, n=999):
        s.busy = True
        while s.jobs and n > 0: s.jobs.pop(0)(); n -= 1
        s.busy = False
    vc = 5

def launch2(name="fnet_b_kernel", stamps=False, kidx=1, PACE=60, PACE2=100, PACE3=48, w2pre=0, hdepth=11, w2at=0):
    k = K(name, (256,1,1), (256,1,1), lds=LDS2, vgpr=512, sgpr=102, accum=256)
    st = Stamper(k, stamps, base=68)
    lg = Q(k, "lgkmcnt", 15); vm = Q(k, "vmcnt", 63)
    pc = Pacer(); k.hook = pc.tick
    SA, SC, SW = 20, 21, 22
    k("s_cmp_ge_u32 s2, 256"); k(f"s_cbranch_scc1 {name}_end")
    st(); st()
    k("s_load_dwordx2 s[4:5], s[0:1], 0")
    k("s_load_dwordx2 s[6:7], s[0:1], 96")
    k("s_load_dwordx8 s[8:15], s[0:1], 48")
    k("s_load_dwordx2 s[18:19], s[0:1], 80")
    k("v_lshrrev_b32 v2, 6, v0")
    k("v_and_b32 v1, 63, v0")
    k(f"v_readfirstlane_b32 s{SW}, v2")
    blk_ids(k, SA, SC, 23, 24)
    k(f"s_sub_u32 s23, 64, s{SA}"); k(f"s_cmp_eq_u32 s{SA}, 0"); k("s_cselect_b32 s23, 32, s23")
    k(f"s_lshl_b32 s24, s{SW}, 18")
    k(f"s_lshl_b32 s25, s{SA}, 10"); k("s_add_u32 s25, s25, s24")
    k("s_lshl_b32 s26, s23, 10"); k("s_add_u32 s26, s26, s24")
    k(f"s_mul_i32 s27, s{SW}, {4*XS}")
    k("v_lshlrev_b32 v3, 4, v1")
    k("s_mov_b32 s30, 0x200000"); k("s_mov_b32 s31, 0x20000")
    k(f"s_mov_b32 s34, {WS_END}"); k("s_mov_b32 s35, 0x20000")
    k(f"s_lshl_b32 s48, s{SW}, 10")
    k(f"s_lshl_b32 s49, s{SA}, 15"); k("s_add_u32 s49, s49, s48")
    k("s_and_b32 s50, s23, 31"); k("s_lshl_b32 s50, s50, 15"); k("s_add_u32 s50, s50, s48")
    k(f"s_and_b32 s51, s{SW}, 1"); k(f"s_lshr_b32 s52, s{SW}, 1")
    G0 = 192
    k("v_and_b32 v4, 31, v1"); k("v_lshl_add_u32 v5, v4, 1, s51"); k("v_cvt_f32_u32 v5, v5"); k("v_mul_f32 v5, 0x3c800000, v5")
    k("v_lshrrev_b32 v6, 5, v1")
    k("v_lshlrev_b32 v7, 2, v6"); k("v_cvt_f32_u32 v7, v7"); k("v_mul_f32 v7, v7, v5"); k("v_mul_f32 v8, 0x40a00000, v5")
    k("s_lshl_b32 s16, s51, 31"); k("s_or_b32 s16, s16, 0x3f800000"); k("v_mov_b32 v9, s16")
    k("s_mov_b32 s44, -1"); k("s_mov_b32 s45, 0")
    def ggen(ks):
        for jj in range(4):
            k("v_cos_f32 v10, v7"); k("v_sin_f32 v11, v7")
            k(f"v_add_f32 v7, v7, v{5 if jj < 3 else 8}")
            if ks == 0 and jj == 0: k("v_cndmask_b32 v11, v11, v9, s[44:45]")
            k(f"v_cvt_pk_bf16_f32 v{G0+4*ks+jj}, v10, v11")
    ggen(0); ggen(1)
    k("s_mov_b32 m0, s27")
    k("s_waitcnt lgkmcnt(0)")
    k("s_mov_b32 s28, s4"); k("s_and_b32 s29, s5, 0xffff")
    k("s_mov_b32 s32, s6"); k("s_and_b32 s33, s7, 0xffff")
    def dma_x1(mt, u):
        if mt or u: k(f"s_add_u32 m0, s27, {(16*mt+u)*XS}")
        k(f"s_add_u32 s57, s{25 + (mt>>1)}, {((mt&1)*16+u)*65536}")
        vm("buffer_load_dwordx4 v3, s[28:31], s57 offen lds", "x")
    def dma_pq1(j, S):
        k(f"s_add_u32 m0, s48, {PQB + S*32768 + j*4096}")
        k(f"s_add_u32 s57, s{49+S}, {j*4096}")
        vm("buffer_load_dwordx4 v3, s[32:35], s57 offen lds", "pq")
    jobs = [(lambda mt=mt, u=u: dma_x1(mt, u)) for mt in range(4) for u in range(4)] + [(lambda j=j, S=S: dma_pq1(j, S)) for j in range(8) for S in range(2)]
    pc.start(jobs, PACE); pc.flush(10)
    st()
    ggen(2); ggen(3)
    k("s_lshl_b32 s16, s51, 5"); k("v_add_u32 v12, s16, v4")
    k("v_sub_u32 v13, 63, v12")
    k("v_sub_u32 v14, 32, v4"); k("v_and_b32 v14, 31, v14"); k("v_sub_u32 v15, 63, v4")
    k("s_cmp_eq_u32 s51, 0"); k("s_cselect_b64 vcc, -1, 0"); k("v_cndmask_b32 v14, v15, v14, vcc")
    k(f"s_cmp_eq_u32 s{SA}, 0"); k("s_cselect_b64 vcc, -1, 0"); k("v_cndmask_b32 v13, v13, v14, vcc")
    k("s_lshl_b32 s16, s52, 4"); k(f"s_add_u32 s16, s16, {STB}"); k("v_lshl_add_u32 v14, v6, 3, s16")
    k("v_lshl_add_u32 v16, v12, 6, v14"); k("v_lshl_add_u32 v17, v13, 6, v14")
    k(f"v_mul_u32_u24 v12, {XS}, v12"); k(f"v_mul_u32_u24 v13, {XS}, v13")
    k("s_lshl_b32 s16, s52, 8")
    k("v_lshl_add_u32 v14, v6, 4, s16")
    k("v_add_u32 v20, v12, v14"); k("v_add_u32 v21, v13, v14")
    k("v_sub_u32 v19, v13, v14"); k(f"v_add_u32 v19, {1008-224}, v19")
    k("v_bfe_u32 v4, v1, 3, 1")
    k("v_bfe_u32 v5, v1, 2, 1")
    k("v_lshlrev_b32 v7, 12, v6"); k("v_lshl_add_u32 v7, v4, 10, v7"); k("v_lshl_add_u32 v7, v5, 6, v7")
    k("v_bfe_u32 v5, v1, 4, 1"); k("v_lshl_add_u32 v7, v5, 5, v7")
    k("v_and_b32 v5, 1, v1"); k("v_lshl_add_u32 v7, v5, 4, v7"); k("v_bfe_u32 v5, v1, 1, 1"); k("v_lshl_add_u32 v7, v5, 3, v7")
    k("s_lshl_b32 s16, s51, 15"); k("s_lshl_b32 s17, s52, 9"); k("s_add_u32 s16, s16, s17"); k(f"s_add_u32 s16, s16, {PQB}")
    k("v_add_u32 v7, s16, v7"); k("v_lshlrev_b32 v4, 7, v4"); k("v_add_u32 v22, v7, v4"); k("v_sub_u32 v23, v7, v4")
    k.srd(36, 8, 512*3584)
    VD, VMI, VM4 = 240, 247, 254
    k("s_lshl_b32 s16, s52, 4"); k("s_lshl_b32 s17, s51, 7"); k("s_add_u32 s16, s16, s17")
    k(f"s_mul_i32 s17, s{SC}, 448"); k("s_lshl_b32 s53, s51, 1"); k("s_movk_i32 s54, 2341"); k("s_movk_i32 s55, 3584")
    for v in range(7):
        k(f"v_add_u32 v4, {64*v}, v1")
        k("v_mul_u32_u24 v5, s54, v4"); k("v_lshrrev_b32 v5, 16, v5")
        k("v_mul_u32_u24 v6, 28, v5"); k("v_sub_u32 v6, v4, v6")
        k("v_xor_b32 v6, s53, v6"); k("v_lshl_add_u32 v6, v6, 4, s17")
        k("v_add_u32 v5, s16, v5")
        k(f"v_mad_u32_u24 v{VD+v}, v5, s55, v6")
        if v == 0: k("v_cmp_eq_u32 vcc, 0, v5")
        k("v_sub_u32 v5, 416, v5")
        k(f"v_mad_u32_u24 v{VMI+v}, v5, s55, v6")
        if v == 0:
            k(f"v_subrev_u32 v5, {256*3584}, v{VMI}"); k(f"v_cndmask_b32 v{VM4}, v{VMI}, v5, vcc")
    k(f"s_mul_i32 s56, s{SW}, 7168"); k(f"s_add_u32 s56, s56, {RB}")
    def dma_slab(s, v):
        k(f"s_add_u32 m0, s56, {(s%3)*SL + v*1024}")
        so = (s&3) if s < 4 else 3-(s&3)
        k(f"s_mov_b32 s57, {so*32*3584}")
        r = VD+v if s < 4 else (VM4 if (s == 4 and v == 0) else VMI+v)
        vm(f"buffer_load_dwordx4 v{r}, s[36:39], s57 offen lds", ("s", s))
    def slabjobs(s):
        L = []
        for v in range(7):
            f = (lambda s=s, v=v: dma_slab(s, v)); f.slab = s; L.append(f)
        return L
    k(f"s_lshl_b32 s58, s{SC}, 2"); k(f"s_add_u32 s58, s58, s{SW}"); k(f"s_mul_i32 s58, s58, {56*1024}"); k(f"s_add_u32 s58, s58, {WS_W2}")
    def ld_w2(n):
        if n % 4 == 0: k(f"s_add_u32 s59, s58, {n*1024}")
        vm(f"buffer_load_dwordx4 a[{4*n}:{4*n+3}], v3, s[32:35], s59 offen offset:{(n%4)*1024}", ("w2", n//4))
    w2jobs = [(lambda n=n: ld_w2(n)) for n in range(16, 56)] + [(lambda n=n: ld_w2(n)) for n in range(16)]
    AC, DL, TM = 64, 128, 208
    vm.wait("x"); k("s_barrier")
    st()
    lg("ds_read_u16 v4, v13 offset:512", "x256")
    for n in range(8): lg(f"ds_read_b128 v[{24+4*n}:{27+4*n}], v20 offset:{32*n}", ("xd", n))
    lg.wait("x256")
    lg("ds_write_b32 v13, v4 offset:1024")
    pc.start(slabjobs(0), PACE)
    k("s_mov_b32 s16, 0x00003f80"); k("s_mov_b32 s17, 0x3f800000")
    def rd_xm(n):
        lg(f"ds_read_b128 v[{TM+4*n}:{TM+4*n+3}], v19 offset:{224-32*n}", ("xm", n))
        lg(f"ds_read_b32 v{56+n}, v19 offset:{240-32*n}", ("xm", n))
    for n in range(8):
        lg.wait(("xd", n)); rd_xm(n)
        for h in range(4):
            s = 24+4*n+h; d = AC+8*n+2*h
            k(f"v_lshlrev_b32 v{d}, 16, v{s}"); k(f"v_and_b32 v{d+1}, 0xffff0000, v{s}")
    k(f"v_mov_b32 v24, v{AC}")
    for n in range(8):
        lg.wait(("xm", n))
        s = TM+4*n; d = DL+8*n; a = AC+8*n
        for j in range(8):
            w, sel = (56+n, 16) if j == 0 else (s + (8-j)//2, 16 + ((8-j)&1))
            k(f"v_dot2_f32_bf16 v{d+j}, v{w}, s{sel}, v{a+j} neg_lo:[0,0,1]")
    for j in range(4): k(f"v_pk_add_f32 v[{26+2*j}:{27+2*j}], v[{DL+2*j}:{DL+2*j+1}], v[{DL+8+2*j}:{DL+9+2*j}]")
    for j in range(8, 32):
        d = 26 + 2*(j&3); k(f"v_pk_add_f32 v[{d}:{d+1}], v[{d}:{d+1}], v[{DL+2*j}:{DL+2*j+1}]")
    k("v_pk_add_f32 v[26:27], v[26:27], v[28:29]"); k("v_pk_add_f32 v[30:31], v[30:31], v[32:33]")
    k("v_pk_add_f32 v[26:27], v[26:27], v[30:31]"); k("v_add_f32 v25, v26, v27")
    k("s_cmp_eq_u32 s52, 0"); k("s_cselect_b32 s44, -1, 0"); k("s_mov_b32 s45, 0")
    k("v_lshrrev_b32 v11, 4, v1"); k("v_and_b32 v12, 1, v11"); k("v_lshrrev_b32 v13, 1, v11")
    k("v_lshlrev_b32 v14, 4, v12"); k("v_lshl_add_u32 v14, v13, 3, v14"); k("v_bfe_u32 v15, v1, 2, 2"); k("v_add_u32 v14, v14, v15")
    k("v_mul_u32_u24 v14, 448, v14"); k("v_and_b32 v15, 3, v1"); k("v_lshl_add_u32 v14, v15, 3, v14")
    k("s_lshl_b32 s16, s52, 8"); k(f"s_add_u32 s16, s16, {RB}"); k("v_add_u32 v15, s16, v14"); k("v_lshlrev_b32 v18, 5, v12")
    k("v_add_u32 v4, v15, v18"); k("v_sub_u32 v5, v15, v18")
    k("s_add_u32 s16, s52, 6"); k("v_xor_b32 v18, s16, v12"); k("v_lshl_add_u32 v6, v18, 5, v14"); k(f"v_add_u32 v6, {RB}, v6")
    for j in range(3): k(f"v_add_u32 v{7+j}, {2*SL}, v{4+j}")
    k("v_and_b32 v15, 15, v1"); k("s_lshl_b32 s16, s51, 5"); k("v_add_u32 v18, s16, v15")
    k(f"v_mul_u32_u24 v10, {XS}, v18"); k("v_lshl_add_u32 v10, v12, 8, v10"); k("v_lshl_add_u32 v10, v13, 4, v10")
    k(f"v_lshlrev_b32 v18, 6, v18"); k(f"v_add_u32 v18, {STB}, v18")
    st()
    pc.flush()
    vm.wait("pq"); k("s_barrier")
    st()
    for i in range(4):
        for ks in range(4):
            for hf in range(2):
                r = 16*i + 4*ks + 2*hf
                lg(f"ds_read_b64_tr_b16 a[{r}:{r+1}], v{22+(i&1)} offset:{ks*8192 + hf*2048 + i*128}", ("pq", i, ks))
    for i in range(4):
        for ks in range(4):
            lg.wait(("pq", i, ks | 1))
            d = AC+16*i; r = 16*i+4*ks
            k(f"v_mfma_f32_32x32x16_bf16 v[{d}:{d+15}], a[{r}:{r+3}], v[{G0+4*ks}:{G0+4*ks+3}], v[{d}:{d+15}]")
            if i == 1 and ks == 0:
                lg.all(); k("s_barrier")
                pc.start(slabjobs(1) + slabjobs(2), PACE2)
    st()
    P0 = 40
    def acc(op, base, j, first, r):
        d = base + 2*(j&1)
        if op == "add":
            if first and j < 2: k(f"v_pk_add_f32 v[{d}:{d+1}], v[{r}:{r+1}], v[{r+4}:{r+5}]")
            elif not first: k(f"v_pk_add_f32 v[{d}:{d+1}], v[{d}:{d+1}], v[{r}:{r+1}]")
        else:
            if first and j < 2: k(f"v_pk_mul_f32 v[{d}:{d+1}], v[{r}:{r+1}], v[{r}:{r+1}]")
            else: k(f"v_pk_fma_f32 v[{d}:{d+1}], v[{r}:{r+1}], v[{r}:{r+1}], v[{d}:{d+1}]")
    for n in range(8):
        a = AC+8*n; d = DL+8*n; p = P0 + 8*(n&1); first = (n == 0)
        for j in range(4):
            k(f"v_pk_add_f32 v[{d+2*j}:{d+2*j+1}], v[{d+2*j}:{d+2*j+1}], v[{a+2*j}:{a+2*j+1}]")
            acc("add", 26, j, first, a+2*j)
        if first:
            k(f"v_cndmask_b32 v24, v{a}, v24, s[44:45]"); k(f"v_sub_f32 v38, v24, v{a}"); k(f"v_mov_b32 v{a}, v24")
        for j in range(4):
            k(f"v_cvt_pk_bf16_f32 v{p+4+j}, v{d+2*j}, v{d+2*j+1}"); acc("sq", 34, j, first, d+2*j)
        lg(f"ds_write_b128 v21, v[{p+4}:{p+7}] offset:{512 + 32*n}")
        for j in range(4):
            k(f"v_cvt_pk_bf16_f32 v{p+j}, v{a+2*j}, v{a+2*j+1}"); acc("sq", 30, j, first, a+2*j)
        lg(f"ds_write_b128 v20, v[{p}:{p+3}] offset:{32*n}")
    for b in (26, 30, 34): k(f"v_pk_add_f32 v[{b}:{b+1}], v[{b}:{b+1}], v[{b+2}:{b+3}]")
    k("v_add_f32 v28, v26, v27"); k("v_add_f32 v31, v30, v31"); k("v_add_f32 v33, v34, v35")
    k("v_add_f32 v30, v28, v38"); k("v_add_f32 v32, v28, v25")
    lg("ds_write_b64 v16, v[30:31]"); lg("ds_write_b64 v17, v[32:33] offset:32")
    st()
    vm.wait(("s", 0))
    lg.all(); k("s_barrier")
    st()
    ACC, A0, B0 = 24, 80, 136
    X0 = 152
    def reads(s_, buf):
        slot = (s_ >> 1) % 3; L = []
        for tt in range(2):
            L.append(f"ds_read_b128 v[{B0+buf*8+tt*4}:{B0+buf*8+tt*4+3}], v10 offset:{tt*16*XS + (s_>>3)*512 + (s_&7)*32}")
        for i in range(7):
            base = 4 + (2 if i == 6 else (i&1)) + (3 if slot == 2 else 0)
            off = (slot%2)*SL + (s_&1)*14336 + (0 if i == 6 else 32*i)
            for hf in range(2):
                r = A0 + buf*28 + i*4 + hf*2
                L.append(f"ds_read_b64_tr_b16 v[{r}:{r+1}], v{base} offset:{off + hf*1792}")
        return L
    side = {s_: [] for s_ in range(16)}
    k.srd(60, 10, 3584); k.srd(64, 14, 1024)
    k(f"s_mul_i32 s46, s{SC}, 896"); k(f"s_add_u32 s46, s46, {WS_C}"); k(f"s_mul_i32 s47, s{SC}, 448"); k(f"s_lshl_b32 s53, s{SC}, 7")
    def ld_c(p):
        k(f"s_add_u32 s57, s46, {1792*4*p}")
        vm(f"buffer_load_dword v{X0+40+p}, v16, s[32:35], s57 offen", "c")
    def ld_b():
        vm(f"buffer_load_ushort v{X0+48}, v17, s[60:63], s47 offen", "c")
        for i in range(4): vm(f"buffer_load_dwordx2 v[{X0+80+2*i}:{X0+81+2*i}], v19, s[64:67], s53 offen offset:{32*i}", "b2")
    k("v_lshlrev_b32 v16, 2, v0"); k("v_lshlrev_b32 v17, 1, v0"); k("v_lshlrev_b32 v19, 3, v11")
    side[0] += [f"ds_read_b128 v[{X0+16*tt+4*j}:{X0+16*tt+4*j+3}], v18 offset:{tt*1024+16*j}" for tt in range(2) for j in range(4)]
    L = []
    for tt in range(2):
        b = X0+16*tt
        for w in (8, 4, 2):
            for j in range(w): L.append(f"v_add_f32 v{b+j}, v{b+j}, v{b+w+j}")
    MR = X0+32
    for tt in range(2):
        b = X0+16*tt; m = MR+4*tt
        L += [f"v_mul_f32 v{m}, 0xbb000000, v{b}", f"v_mul_f32 v{b+1}, 0x3b000000, v{b+1}", f"v_mov_b32 v{m+1}, v{m}", f"v_fma_f32 v{b+1}, -v{m}, v{m}, v{b+1}",
              f"v_max_f32 v{b+1}, 0, v{b+1}", f"v_add_f32 v{b+1}, 0x3727c5ac, v{b+1}", f"v_rsq_f32 v{m+2}, v{b+1}", "s_nop 0", f"v_mov_b32 v{m+3}, v{m+2}"]
    for j, ins in enumerate(L): side[2 + j//8].append(ins)
    C = X0+40
    side[9] += ["WAITC", f"v_add_f32 v{C}, v{C}, v{C+1}", f"v_add_f32 v{C+2}, v{C+2}, v{C+3}", f"v_add_f32 v{C+4}, v{C+4}, v{C+5}", f"v_add_f32 v{C+6}, v{C+6}, v{C+7}",
                f"v_add_f32 v{C}, v{C}, v{C+2}", f"v_add_f32 v{C+4}, v{C+4}, v{C+6}", f"v_lshlrev_b32 v{C+8}, 16, v{C+8}"]
    side[10] += [f"v_add_f32 v{C}, v{C}, v{C+4}", f"v_add_u32 v16, {CBB}, v16", f"ds_write_b32 v16, v{C}", f"ds_write_b32 v16, v{C+8} offset:1024",
                 "s_lshl_b32 s16, s52, 9", f"s_add_u32 s16, s16, {CBB}", "v_lshl_add_u32 v16, v11, 4, s16",
                 "s_lshl_b32 s16, s52, 6", f"s_add_u32 s16, s16, {CBB+384}", "v_lshl_add_u32 v17, v11, 4, s16"]
    CF, BF = X0, X0+52
    cb = []
    for i in range(7):
        a, o = (17, 0) if i == 6 else (16, 64*i)
        cb += [f"ds_read_b128 v[{CF+4*i}:{CF+4*i+3}], v{a} offset:{o}", f"ds_read_b128 v[{BF+4*i}:{BF+4*i+3}], v{a} offset:{o+1024}"]
    side[12] += cb[:5]; side[13] += cb[5:10]; side[14] += cb[10:]
    for ins in reads(0, 0): k(ins)
    pc.vc = 0
    pc.start([(lambda p=p: ld_c(p)) for p in range(8)] + [ld_b], PACE3)
    for s_ in range(16):
        buf = s_ & 1; s = s_ >> 1
        nxt = reads(s_+1, buf^1) if s_ < 15 else []
        k("s_waitcnt lgkmcnt(0)")
        if s_ & 1:
            if s+1 < 8:
                while any(getattr(j, "slab", 99) <= s+1 for j in pc.jobs): pc.flush(1)
                vm.wait(("s", s+1))
            k("s_barrier")
            if s+3 < 8:
                ns = sum(1 for j in pc.jobs if hasattr(j, "slab"))
                pc.jobs = pc.jobs[:ns] + slabjobs(s+3) + pc.jobs[ns:]
            if s == w2at: pc.jobs = pc.jobs + w2jobs
        sd = side[s_]
        ni = 0
        for j in range(14):
            i, tt = j >> 1, j & 1
            a = A0+buf*28+i*4; b = B0+buf*8+tt*4; c = ACC+j*4
            cc = "0" if s_ == 0 else f"v[{c}:{c+3}]"
            k(f"v_mfma_f32_16x16x32_bf16 v[{c}:{c+3}], v[{a}:{a+3}], v[{b}:{b+3}], {cc}")
            for _ in range(2 if j < 5 else 1):
                if ni < len(nxt): k(nxt[ni]); ni += 1
            if j >= 5:
                n = 1 if j < 11 else 2
                while sd and n:
                    ins = sd.pop(0)
                    if ins == "WAITC":
                        while ld_b in pc.jobs: pc.flush(1)
                        vm.wait("c")
                    else: k(ins)
                    if not ins.startswith("s_"): n -= 1
        assert ni == len(nxt) and not sd, (s_, sd)
    st()
    pc.vc = 5; hold = pc.jobs; pc.jobs = []
    k(f"s_lshl_b32 s16, s{SA}, 3"); k(f"s_add_u32 s16, s16, s{SC}"); k(f"s_lshl_b32 s54, s16, 7"); k(f"s_add_u32 s54, s54, {WS_FLG}")
    k(f"s_mul_i32 s16, s16, {SL}"); k(f"s_add_u32 s16, s16, {WS_H}"); k("s_lshl_b32 s17, s51, 11"); k("s_add_u32 s16, s16, s17")
    k("s_lshl_b32 s17, s52, 10"); k("s_add_u32 s55, s16, s17"); k(f"s_add_u32 s55, s55, {3*4096}")
    k("s_lshl_b32 s17, s52, 14"); k("s_add_u32 s16, s16, s17")
    k("s_waitcnt lgkmcnt(0)")
    HP = A0
    def epi(i, tt, dst):
        c = ACC+(i*2+tt)*4; m = MR+4*tt
        for h in range(2): k(f"v_pk_fma_f32 v[{c+2*h}:{c+2*h+1}], v[{m}:{m+1}], v[{CF+4*i+2*h}:{CF+4*i+2*h+1}], v[{c+2*h}:{c+2*h+1}]")
        for h in range(2): k(f"v_pk_fma_f32 v[{c+2*h}:{c+2*h+1}], v[{m+2}:{m+3}], v[{c+2*h}:{c+2*h+1}], v[{BF+4*i+2*h}:{BF+4*i+2*h+1}]")
        for h in range(4): k(f"v_max_f32 v{c+h}, 0, v{c+h}")
        for h in range(2): k(f"v_pk_mul_f32 v[{c+2*h}:{c+2*h+1}], v[{c+2*h}:{c+2*h+1}], v[{c+2*h}:{c+2*h+1}]")
        for h in range(2): k(f"v_cvt_pk_bf16_f32 v{dst+h}, v{c+2*h}, v{c+2*h+1}")
    n = 0
    for p in range(3):
        for tt in range(2):
            d = HP+4*n; epi(2*p, tt, d); epi(2*p+1, tt, d+2); n += 1
            if tt == 0 and p: k(f"s_add_u32 s16, s16, 4096")
            vm(f"buffer_store_dwordx4 v[{d}:{d+3}], v3, s[32:35], s16 offen offset:{tt*1024} sc1", "H")
    d = HP+4*n; epi(6, 0, d); epi(6, 1, d+2)
    vm(f"buffer_store_dwordx4 v[{d}:{d+3}], v3, s[32:35], s55 offen sc1", "H")
    st()
    pc.jobs = hold; pc.flush(w2pre)
    hold = pc.jobs; pc.jobs = []
    RS = 8
    k(f"s_lshl_b32 s16, s{SW}, 4"); k("v_add_u32 v4, s16, v15"); k(f"v_mul_u32_u24 v4, {XS}, v4")
    lab = k.label("mir"); lab2 = k.label("res")
    k(f"s_cmp_ge_u32 s{SC}, 4"); k(f"s_cbranch_scc1 {lab}")
    k("v_lshl_add_u32 v4, v11, 3, v4"); k("v_add_u32 v4, s53, v4")
    for i in range(4): k(f"ds_read_b64 v[{24+2*i}:{25+2*i}], v4 offset:{32*i}")
    k("s_waitcnt lgkmcnt(0)")
    k(f"s_branch {lab2}")
    k(f"{lab}:")
    k("v_lshlrev_b32 v5, 3, v11"); k("v_sub_u32 v5, v4, v5"); k(f"s_sub_u32 s16, {512+1016-96}, s53"); k("v_add_u32 v5, s16, v5")
    for i in range(4): k(f"ds_read_b64 v[{32+2*i}:{33+2*i}], v5 offset:{96-32*i}")
    k(f"v_add_u32 v6, 104, v5"); k("v_add_u32 v4, 512, v4"); k("v_add_u32 v7, 512, v4"); k("v_cmp_eq_u32 vcc, v6, v7"); k("v_cndmask_b32 v6, v6, v4, vcc")
    k("ds_read_u16 v40, v6")
    for i in range(1, 4): k(f"ds_read_u16 v{40+i}, v5 offset:{104-32*i}")
    k("s_mov_b32 s16, 0x03020504"); k("s_waitcnt lgkmcnt(0)")
    for i in range(4):
        k(f"v_and_b32 v{24+2*i}, 0xffff0000, v{33+2*i}"); k(f"v_or_b32 v{24+2*i}, v{24+2*i}, v{40+i}")
        k(f"v_perm_b32 v{25+2*i}, v{33+2*i}, v{32+2*i}, s16")
    k(f"{lab2}:")
    k("s_mov_b32 s16, 0x00003f80"); k("s_mov_b32 s17, 0x3f800000")
    k("v_mov_b32 v2, v15"); k("v_mov_b32 v6, v11")
    vm.wait("b2")
    for j in range(8):
        k(f"v_lshlrev_b32 v{RS+2*j}, 16, v{24+j}"); k(f"v_and_b32 v{RS+2*j+1}, 0xffff0000, v{24+j}")
    for j in range(8):
        k(f"v_dot2_f32_bf16 v{RS+2*j}, v{X0+80+j}, s16, v{RS+2*j}"); k(f"v_dot2_f32_bf16 v{RS+2*j+1}, v{X0+80+j}, s17, v{RS+2*j+1}")
    vm.wait("H"); k("s_barrier")
    st()
    lab = k.label("nf")
    k(f"s_cmp_lg_u32 s{SW}, 0"); k(f"s_cbranch_scc1 {lab}")
    k("v_mov_b32 v4, 1"); k("v_mov_b32 v5, 0"); k("s_mov_b64 exec, 1")
    k("buffer_store_dword v4, v5, s[32:35], s54 offen sc1"); k("s_mov_b64 exec, -1")
    k(f"{lab}:")
    vm.q.append(None)
    pc.jobs = hold; pc.flush()
    st()
    k(f"s_lshl_b32 s16, s{SA}, 3"); k(f"s_lshl_b32 s17, s{SW}, 1"); k("s_add_u32 s16, s16, s17")
    k(f"s_lshl_b32 s54, s16, 7"); k(f"s_add_u32 s54, s54, {WS_FLG}")
    k(f"s_mul_i32 s55, s16, {SL}"); k(f"s_add_u32 s55, s55, {WS_H}")
    k("v_and_b32 v4, 1, v1"); k("v_lshlrev_b32 v4, 7, v4"); k("s_mov_b32 s16, 0x8000")
    p = k.label("poll"); go = k.label("go")
    k(f"{p}:")
    k("buffer_load_dword v5, v4, s[32:35], s54 offen sc1")
    k("s_sub_u32 s16, s16, 1")
    k("s_waitcnt vmcnt(0)")
    k("v_cmp_ne_u32 vcc, 1, v5")
    k(f"s_cbranch_scc1 {go}")
    k(f"s_cbranch_vccnz {p}")
    k(f"{go}:")
    vm.q = []
    st()
    AC2, H0 = 24, 88
    hdepth = min(hdepth, (256-H0)//16)
    def ld_h(q):
        k(f"s_add_u32 s59, s55, {q*4096}")
        for T in range(4):
            r = H0+16*(q % hdepth)+4*T
            vm(f"buffer_load_dwordx4 v[{r}:{r+3}], v3, s[32:35], s59 offen offset:{T*1024} sc1", ("h", q))
    nq = 0
    for q in range(3): ld_h(q); nq += 1
    for q in range(14):
        vm.wait(("h", q))
        b = H0+16*(q % hdepth)
        if q % 7 == 3:
            for hh in range(2):
                k(f"v_swap_b32 v{b+8*hh+2}, v{b+8*hh+4}"); k(f"v_swap_b32 v{b+8*hh+3}, v{b+8*hh+5}")
        for T in range(4):
            for i in range(4):
                c = AC2+16*T+4*i; a = 16*q+4*i
                cc = "0" if q == 0 else f"v[{c}:{c+3}]"
                k(f"v_mfma_f32_16x16x32_bf16 v[{c}:{c+3}], a[{a}:{a+3}], v[{b+4*T}:{b+4*T+3}], {cc}")
            if T == 0 and nq < 14: ld_h(nq); nq += 1
    st()
    k("v_mov_b32 v4, v3")
    fin = k.label("fin"); labs = [k.label("rw") for _ in range(4)]
    for w in range(1, 4): k(f"s_cmp_eq_u32 s{SW}, {w}"); k(f"s_cbranch_scc1 {labs[w]}")
    for w in range(4):
        k(f"{labs[w]}:")
        k("s_nop 7")
        for d in range(1, 4):
            T = (w+d) & 3
            for i in range(4):
                c = AC2+16*T+4*i
                k(f"ds_write_b128 v4, v[{c}:{c+3}] offset:{(T*3+d-1)*4096 + i*1024}")
        for j in range(8):
            c = AC2+16*w+2*j
            k(f"v_pk_add_f32 v[{RS+2*j}:{RS+2*j+1}], v[{RS+2*j}:{RS+2*j+1}], v[{c}:{c+1}]")
        if w < 3: k(f"s_branch {fin}")
    k(f"{fin}:")
    k(f"s_mul_i32 s16, s{SW}, {3*4096}"); k("v_add_u32 v4, s16, v3")
    k.srd(40, 18, 2048*1024)
    k(f"s_and_b32 s16, s{SW}, 1"); k("s_lshl_b32 s16, s16, 4"); k("v_add_u32 v2, s16, v2"); k("v_lshlrev_b32 v2, 16, v2")
    k(f"s_cmp_ge_u32 s{SW}, 2"); k(f"s_cselect_b32 s16, s23, s{SA}"); k("s_lshl_b32 s16, s16, 10"); k("s_add_u32 s16, s16, s53")
    k("v_and_b32 v5, 1, v6"); k("v_lshl_add_u32 v2, v5, 5, v2"); k("v_lshrrev_b32 v5, 1, v6"); k("v_lshl_add_u32 v2, v5, 4, v2")
    k("s_waitcnt lgkmcnt(0)"); k("s_barrier")
    for j in range(12): lg(f"ds_read_b128 v[{H0+4*j}:{H0+4*j+3}], v4 offset:{j*1024}", j)
    for j in range(12):
        lg.wait(j); i = j & 3
        for h in range(2): k(f"v_pk_add_f32 v[{RS+4*i+2*h}:{RS+4*i+2*h+1}], v[{RS+4*i+2*h}:{RS+4*i+2*h+1}], v[{H0+4*j+2*h}:{H0+4*j+2*h+1}]")
    for j in range(8): k(f"v_cvt_pk_bf16_f32 v{24+j}, v{RS+2*j}, v{RS+2*j+1}")
    for p in range(2):
        k(f"v_permlane16_swap_b32 v{24+4*p}, v{26+4*p}"); k(f"v_permlane16_swap_b32 v{25+4*p}, v{27+4*p}")
    for p in range(2): k(f"buffer_store_dwordx4 v[{24+4*p}:{27+4*p}], v2, s[40:43], s16 offen offset:{64*p}")
    st()
    if stamps: k("s_waitcnt vmcnt(0)")
    st.finish(kidx, 6, SW)
    k(f"{name}_end:"); k("s_endpgm")
    return k

def make(path, stamps, o1={}, o2={}):
    k1 = launch1(stamps=stamps, **o1)
    k2 = launch2(stamps=stamps, **o2)
    k2("code_end:")
    open(path, "w").write(build([k1, k2], [k1, k2]))
if __name__ == "__main__":
    import sys
    make(sys.argv[1], True)
    make(sys.argv[2], False)
```

```python
from l2 import *
def spin(k, name, ticks):
    i = k.lines.index(f"{name}_end:")
    L = ["s_memrealtime s[4:5]", "s_waitcnt lgkmcnt(0)", f"s_add_u32 s6, s4, {ticks}", f"{name}_spin:", "s_memrealtime s[8:9]", "s_waitcnt lgkmcnt(0)",
         "s_sub_u32 s10, s8, s6", "s_cmp_lt_i32 s10, 0", f"s_cbranch_scc1 {name}_spin"]
    k.lines[i:i] = [(l if l.endswith(":") else "    "+l) for l in L]
def mk(path, mode):
    k1 = launch1(stamps=False); k2 = launch2(stamps=False)
    e = K("empty_kernel", (256,1,1), (256,1,1), vgpr=8, sgpr=16); e("s_endpgm")
    if mode == "C": spin(k1, "fnet_a_kernel", 300)
    if mode == "D": spin(k2, "fnet_b_kernel", 300)
    k2("code_end:")
    L = [k1, k2]; Ks = [k1, k2]
    if mode == "B": L = [e, k1, k2]; Ks = [k1, k2, e]
    if mode == "E": L = [k1, e, k2]; Ks = [k1, k2, e]
    open(path, "w").write(build(L, Ks))
for m in "ABCDE": mk(f"../cal{m}.s", m)
```
